```python
import torch

def _softmax(x, axis=-1):
    return torch.softmax(x, dim=axis)
def _gelu(x):
    return torch.nn.functional.gelu(x, approximate="tanh")
def _silu(x):
    return torch.nn.functional.silu(x)
def _sigmoid(x):
    return torch.sigmoid(x)
def _layernorm(x, axis=-1, eps=1e-5):
    m = x.mean(dim=axis, keepdim=True)
    v = x.var(dim=axis, keepdim=True, unbiased=False)
    return (x - m) / torch.sqrt(v + eps)
def _scatter_add(tgt, idx, src, axis=0):
    return tgt.clone().index_add_(axis, idx, src)
def _segment_sum(src, seg, n):
    out = torch.zeros((n,) + src.shape[1:], dtype=src.dtype)
    return out.index_add_(0, seg, src)
def _pad(x, pw):
    flat = tuple(v for pair in reversed(pw) for v in pair)
    return torch.nn.functional.pad(x, flat)

kernel_name = 'parallel_sum__sliding_block_cached__dense_activation_silu__decode'

def setup_inputs():

    _w = (lambda a: (lambda t: t.to(torch.bfloat16) if t.is_floating_point() else t)(torch.as_tensor(a)))
    def _A_setup():
        B, Sq, D = 1, 1, 1024
        Hq, Hkv, Sk, Dh = 32, 4, 65536, 128
        assert Hq % Hkv == 0, (Hq, Hkv)
        return {
            "x": _w((lambda *s: torch.randn(*s, dtype=torch.bfloat16) * 0.05)(B, Sq, D)),
            "k_cache": _w((lambda *s: torch.randn(*s, dtype=torch.bfloat16) * 3.2)(B, Hkv, Sk, Dh)),
            "v_cache": _w((lambda *s: torch.randn(*s, dtype=torch.bfloat16) * 0.8)(B, Hkv, Sk, Dh)),
            "wq": _w((lambda *s: torch.randn(*s, dtype=torch.bfloat16) * 3.2)(D, Hq * Dh) * (D ** -0.5)),
            "wo": _w((lambda *s: torch.randn(*s, dtype=torch.bfloat16) * 0.8)(Hq * Dh, D) * ((Hq * Dh) ** -0.5)),
        }
    _A_in = _A_setup()

    def _B_setup():
        B, S, D, F = 1, 1, 1024, 3584
        return {
            "x": _w((lambda *s: torch.randn(*s, dtype=torch.bfloat16) * 0.05)(B, S, D)),
            "w1": _w((lambda *s: torch.randn(*s, dtype=torch.bfloat16) * 3.2)(D, F) * (D ** -0.5)),
            "w2": _w((lambda *s: torch.randn(*s, dtype=torch.bfloat16) * 0.2)(F, D) * (F ** -0.5)),
        }
    _B_in = _B_setup()

    return {
        "A_x": _A_in["x"],
        "A_k_cache": _A_in["k_cache"],
        "A_v_cache": _A_in["v_cache"],
        "A_wq": _A_in["wq"],
        "A_wo": _A_in["wo"],
        "B_x": _B_in["x"],
        "B_w1": _B_in["w1"],
        "B_w2": _B_in["w2"],
    }

def reference(A_x, A_k_cache, A_v_cache, A_wq, A_wo, B_x, B_w1, B_w2):
    def _A_ref(x, k_cache, v_cache, wq, wo):
        B, Sq, D = x.shape
        Hq, Dh = 32, 128
        Hkv, Sk = k_cache.shape[1], k_cache.shape[2]
        W = min(4096, max(256, Sk // 4))
        rep = Hq // Hkv
        q = (lambda x, *d: x.permute(*d))((x @ wq).reshape(B, Sq, Hq, Dh), 0, 2, 1, 3)
        k = (lambda x, n, axis: torch.repeat_interleave(x, n, dim=axis))(k_cache[:, :, Sk - W:, :], rep, axis=1)
        v = (lambda x, n, axis: torch.repeat_interleave(x, n, dim=axis))(v_cache[:, :, Sk - W:, :], rep, axis=1)
        scores = torch.einsum("bhqd,bhkd->bhqk", q, k) * (Dh ** -0.5)
        p = _softmax(scores, axis=-1)
        o = torch.einsum("bhqk,bhkd->bhqd", p, v)
        return (lambda x, *d: x.permute(*d))(o, 0, 2, 1, 3).reshape(B, Sq, Hq * Dh) @ wo

    def _B_ref(x, w1, w2):
        h = torch.einsum("bsd,df->bsf", x, w1)
        h = _silu(h)
        out = torch.einsum("bsf,fd->bsd", h, w2)
        return out

    x = A_x
    xn = _layernorm(x, axis=-1)
    return x + _A_ref(xn, A_k_cache, A_v_cache, A_wq, A_wo) + _B_ref(xn, B_w1, B_w2)
```

```python
NAME = "parallel_sum__sliding_block_cached__dense_activation_silu__decode_kernel"
HDR = open("parallel_sum__sliding_block_cached__dense_activation_silu__decode.s.ref").read().split("; Override launch")[0]
class Asm:
    def __init__(self): self.l = []
    def __call__(self, s):
        for x in s.strip("\n").split("\n"): self.l.append("    " + x.strip() if not x.strip().endswith(":") else x.strip())
    def text(self): return "\n".join(self.l) + "\n"
def wrap(body, grid, block, lds, vgpr, sgpr=102, name=NAME):
    acc = (vgpr + 3) // 4 * 4
    return (HDR + f"; @launch grid=({grid},1,1) block=({block},1,1) lds={lds}\n"
        '.amdgcn_target "amdgcn-amd-amdhsa--gfx950"\n.text\n'
        f".globl {name}\n.p2align 8\n.type {name},@function\n{name}:\n" + body +
        '.section .rodata,"a"\n.p2align 6\n'
        f".amdhsa_kernel {name}\n  .amdhsa_next_free_vgpr {vgpr}\n  .amdhsa_next_free_sgpr {sgpr}\n  .amdhsa_accum_offset {acc}\n"
        "  .amdhsa_group_segment_fixed_size 0\n  .amdhsa_kernarg_size 88\n  .amdhsa_user_sgpr_count 2\n"
        "  .amdhsa_user_sgpr_kernarg_segment_ptr 1\n  .amdhsa_system_sgpr_workgroup_id_x 1\n.end_amdhsa_kernel\n")
```

```python
import sys
from gen_common import *

P1 = 1056
P2 = 2080
R0, R1, RK, RV, RO = 0, 33792, 67584, 84480, 101376
XN = 135168; QB = XN + 256; QPITCH = 272; HB = QB + 8 * QPITCH; OB = HB + 128; FL = OB + 128
F_PROG, F_CQ, F_Q, F_H, F_O = FL, FL + 4, FL + 8, FL + 12, FL + 16
LDS_SIZE = FL + 64
W_QP = 0x1000; W_HP = W_QP + 0x20000; W_ML = W_HP + 0x20000; W_OP = W_ML + 0x8000; W_FP = W_OP + 0x100000
SPIN = 200000

def gen(D=24, D0=None, stamps=False, prio=True, sleep1=0, nt="nt"):
    A = Asm()
    st_used = []
    def stamp(i):
        if stamps:
            A(f"s_memrealtime s[{64+2*i}:{65+2*i}]"); st_used.append(i)
    lab = [0]
    def L(p="L"):
        lab[0] += 1; return f"{p}{lab[0]}"
    def lds_wait(off, thr, tmp="v127"):
        l = L("W"); e = L("E")
        A(f"s_mov_b32 s62, {SPIN}")
        A(f"{l}:\nds_read_b32 {tmp}, v126 offset:{off-FL}\ns_waitcnt lgkmcnt(0)\nv_readfirstlane_b32 s63, {tmp}\ns_sub_u32 s62, s62, 1\ns_cbranch_scc1 {e}\ns_cmp_lt_i32 s63, {thr}\ns_cbranch_scc1 {l}\n{e}:")
    def lds_inc(off):
        A(f"s_mov_b64 exec, 1\nds_add_u32 v126, v125 offset:{off-FL}\ns_mov_b64 exec, -1")
    def pack(d, a):
        A(f"v_perm_b32 v{d}, v{a}, v{a+3}, s56\nv_perm_b32 v{d+1}, v{a+1}, v{a+3}, s57\nv_perm_b32 v{d+2}, v{a+2}, v{a+3}, s58\nv_mov_b32 v{d+3}, s59")
    def unpack4(g):
        A(f"v_perm_b32 v{g+3}, v{g+1}, v{g}, s60\nv_perm_b32 v{g+3}, v{g+2}, v{g+3}, s61")
    def rowsum(v, op="v_add_f32"):
        for m in ("quad_perm:[1,0,3,2]", "quad_perm:[2,3,0,1]", "row_half_mirror", "row_mirror"):
            A(f"s_nop 1\n{op}_dpp v{v}, v{v}, v{v} {m} row_mask:0xf bank_mask:0xf")
    def xrow(v, t, op="v_add_f32"):
        A(f"v_mov_b32 v{t}, v{v}\ns_nop 1\nv_permlane16_swap_b32 v{v}, v{t}\ns_nop 1\n{op} v{v}, v{v}, v{t}")
        A(f"v_mov_b32 v{t}, v{v}\ns_nop 1\nv_permlane32_swap_b32 v{v}, v{t}\ns_nop 1\n{op} v{v}, v{v}, v{t}")
    def gather(loads, tags, sleep=0):
        l = L("G"); e = L("E")
        A(f"s_mov_b32 s62, {SPIN}\n{l}:")
        for x in loads: A(x)
        n = len(tags)
        for i, t in enumerate(tags):
            A(f"s_waitcnt vmcnt({n-1-i})")
            if i == 0: A(f"v_cmp_eq_u32 vcc, s59, v{t}\ns_mov_b64 s[54:55], vcc" if n > 1 else f"v_cmp_eq_u32 s[54:55], s59, v{t}")
            else: A(f"v_cmp_eq_u32 vcc, s59, v{t}\ns_and_b64 s[54:55], s[54:55], vcc")
        A(f"s_sub_u32 s62, s62, 1\ns_cbranch_scc1 {e}\ns_cmp_eq_u64 s[54:55], exec\ns_cbranch_scc1 {e}")
        if sleep: A(f"s_sleep {sleep}")
        A(f"s_branch {l}\n{e}:")

    if stamps:
        for i in range(16): A(f"s_mov_b32 s{64+2*i}, 0")
    stamp(0)
    A("s_load_dwordx16 s[16:31], s[0:1], 0")
    A("s_load_dwordx2 s[36:37], s[0:1], 80")
    A("s_load_dwordx2 s[40:41], s[0:1], 64")
    A("s_cmp_ge_u32 s2, 256\ns_cbranch_scc1 L_end")
    A("v_lshrrev_b32 v1, 6, v0\nv_and_b32 v0, 63, v0")
    A("s_and_b32 s3, s2, 7\ns_lshr_b32 s4, s2, 3")
    A("v_readfirstlane_b32 s5, v1")
    A("s_and_b32 s6, s3, 1\ns_lshr_b32 s7, s3, 1")
    A("s_lshl_b32 s8, s6, 2\ns_add_u32 s8, s8, s4\ns_and_b32 s8, s8, 7")
    A("s_lshl_b32 s9, s6, 5\ns_add_u32 s9, s9, s4")
    A("s_mul_i32 s10, s6, 28\ns_add_u32 s10, s10, s4")
    A("s_lshr_b32 s11, s4, 3\ns_lshl_b32 s12, s3, 2\ns_add_u32 s11, s11, s12")
    A("s_lshr_b32 s12, s10, 3\ns_mul_i32 s13, s7, 7\ns_add_u32 s12, s12, s13")
    A("s_and_b32 s13, s4, 3")
    A("s_lshr_b32 s14, s9, 2\ns_lshl_b32 s15, s7, 4\ns_add_u32 s14, s14, s15")
    A(f"v_mov_b32 v126, {FL}\nv_mov_b32 v125, 1")
    A("s_mov_b32 s38, 0x10000000\ns_mov_b32 s39, 0x20000\ns_mov_b32 s35, 0x20000")
    A("s_cmp_eq_u32 s5, 8\ns_cbranch_scc1 L_loader")

    if prio: A("s_setprio 2")
    A("v_lshlrev_b32 v2, 5, v0\nv_lshlrev_b32 v3, 2, v0\ns_lshl_b32 s15, s8, 8\nv_add_u32 v3, s15, v3")
    A("v_mov_b32 v4, 0\nv_lshl_add_u32 v5, v0, 2, v126")
    A("s_mov_b64 exec, 0xffff\nds_write_b32 v5, v4\ns_mov_b64 exec, -1")
    A("s_waitcnt lgkmcnt(0)")
    A("s_load_dword s59, s[36:37], 0")
    A("global_load_dwordx4 v[8:11], v2, s[16:17]\nglobal_load_dwordx4 v[12:15], v2, s[16:17] offset:16\nglobal_load_dword v16, v3, s[16:17]")
    A("s_barrier")
    stamp(1)
    A("s_mov_b32 s56, 0x07060501\ns_mov_b32 s57, 0x07060502\ns_mov_b32 s58, 0x07060503")
    A("s_mov_b32 s60, 0x0c04000c\ns_mov_b32 s61, 0x0402010c\ns_mov_b32 s52, 0xffff0000\ns_mov_b32 s53, 0x3f803f80")
    A("v_lshrrev_b32 v4, 4, v0\nv_bfe_u32 v5, v0, 2, 2\nv_and_b32 v6, 3, v0\nv_and_b32 v7, 15, v0")
    A("v_mul_u32_u24 v120, 320, v5\nv_lshl_add_u32 v120, v6, 3, v120")
    A(f"v_mul_u32_u24 v121, {P1}, v4\nv_mul_u32_u24 v122, {P2}, v4")
    A("s_lshl_b32 s15, s5, 5\nv_xor_b32 v119, s15, v120\nv_add_u32 v119, v119, v121")
    A(f"v_lshlrev_b32 v118, 4, v4\nv_add_u32 v118, {XN}, v118")
    A("v_bfe_u32 v17, v0, 1, 2\nv_lshl_add_u32 v17, v4, 2, v17\nv_lshlrev_b32 v17, 4, v17\nv_and_b32 v18, 8, v0\nv_add_u32 v17, v17, v18\nv_and_b32 v18, 1, v0\nv_lshl_add_u32 v17, v18, 2, v17")
    A(f"v_add_u32 v17, {XN}, v17")
    A("v_mov_b32 v20, 0\ns_waitcnt vmcnt(1)")
    for i in range(8): A(f"v_dot2_f32_bf16 v20, v{8+i}, s53, v20")
    for i in range(8): A(f"v_lshlrev_b32 v{24+2*i}, 16, v{8+i}\nv_and_b32 v{25+2*i}, s52, v{8+i}")
    rowsum(20); xrow(20, 21)
    A("v_mul_f32 v20, 0xba800000, v20\nv_mov_b32 v21, v20\nv_mov_b32 v22, 0\nv_mov_b32 v23, 0")
    for i in range(8): A(f"v_pk_add_f32 v[{24+2*i}:{25+2*i}], v[{24+2*i}:{25+2*i}], v[20:21]")
    for i in range(8): A(f"v_pk_fma_f32 v[22:23], v[{24+2*i}:{25+2*i}], v[{24+2*i}:{25+2*i}], v[22:23]")
    A("v_add_f32 v22, v22, v23")
    rowsum(22); xrow(22, 23)
    A("v_mul_f32 v22, 0x3a800000, v22\nv_cvt_pk_bf16_f32 v20, v20, v22")
    A("v_and_b32 v22, s52, v20\nv_lshlrev_b32 v20, 16, v20\nv_add_f32 v22, 0x3727c5ac, v22")
    A("v_cvt_pk_bf16_f32 v22, v22, v22\nv_and_b32 v22, s52, v22\nv_sqrt_f32 v22, v22\ns_nop 0")
    A("v_cvt_pk_bf16_f32 v22, v22, v22\nv_and_b32 v22, s52, v22\nv_rcp_f32 v23, v22")
    A("s_waitcnt vmcnt(0)\nv_lshlrev_b32 v24, 16, v16\nv_and_b32 v25, s52, v16\nv_add_f32 v24, v24, v20\nv_add_f32 v25, v25, v20")
    A("v_cvt_pk_bf16_f32 v24, v24, v25\nv_and_b32 v25, s52, v24\nv_lshlrev_b32 v24, 16, v24")
    A("v_mul_f32 v26, v24, v23\nv_mul_f32 v27, v25, v23\nv_fma_f32 v24, -v26, v22, v24\nv_fma_f32 v25, -v27, v22, v25\nv_fma_f32 v26, v24, v23, v26\nv_fma_f32 v27, v25, v23, v27")
    A("v_cvt_pk_bf16_f32 v24, v26, v27\nds_write_b32 v17, v24")
    for s in range(4): A(f"ds_read_b128 v[{8+4*s}:{11+4*s}], v118 offset:{64*s}")
    A("s_waitcnt lgkmcnt(0)\ns_mov_b32 s51, s59\ns_mul_i32 s59, s59, 0x9e3779b1\ns_add_u32 s59, s59, 0x7f4a7c15")
    A("v_lshlrev_b32 v117, 4, v4")
    A(f"s_lshl_b32 s42, s11, 12\ns_lshl_b32 s43, s8, 9\ns_add_u32 s42, s42, s43\ns_lshl_b32 s43, s5, 6\ns_add_u32 s42, s42, s43\ns_add_u32 s42, s42, {W_QP}")
    stamp(2)
    lds_wait(F_PROG, 32)
    stamp(3)
    for s in range(4):
        for h in range(2): A(f"ds_read_b64_tr_b16 v[{24+4*s+2*h}:{25+4*s+2*h}], v119 offset:{R0+(8*s+4*h)*P1}")
    for s in range(4):
        A(f"s_waitcnt lgkmcnt({6-2*s})" if not stamps else "s_waitcnt lgkmcnt(0)")
        A(f"v_mfma_f32_16x16x32_bf16 v[40:43], v[{24+4*s}:{27+4*s}], v[{8+4*s}:{11+4*s}], {'0' if s == 0 else 'v[40:43]'}")
    lds_inc(F_CQ)
    A("s_nop 4")
    pack(44, 40)
    A("s_mov_b32 s44, 0x00010001\ns_mov_b32 s45, 0x00010001\ns_mov_b64 exec, s[44:45]")
    A("buffer_store_dwordx4 v[44:47], v117, s[36:39], s42 offen sc1\ns_mov_b64 exec, -1")
    stamp(4)
    A("s_cmp_lt_u32 s5, 4\ns_cbranch_scc1 L_gq\ns_cmp_ge_u32 s4, 28\ns_cbranch_scc1 L_gq")
    A(f"s_and_b32 s15, s5, 3\ns_lshl_b32 s15, s15, 6\nv_xor_b32 v116, s15, v120\nv_add_u32 v116, v116, v121\nv_add_u32 v116, {R1}, v116\nv_xor_b32 v115, s15, v120\nv_xor_b32 v115, 32, v115\nv_add_u32 v115, v115, v121\nv_add_u32 v115, {R1}, v115")
    A(f"v_lshl_add_u32 v114, v7, 9, v117\ns_lshl_b32 s42, s12, 12\ns_lshl_b32 s43, s15, 4\ns_add_u32 s42, s42, s43\ns_lshl_b32 s43, s8, 6\ns_add_u32 s42, s42, s43\ns_add_u32 s42, s42, {W_HP}")
    lds_wait(F_PROG, 64)
    for b, va in ((0, 116), (1, 115)):
        for s in range(4):
            for h in range(2): A(f"ds_read_b64_tr_b16 v[{48+16*b+4*s+2*h}:{49+16*b+4*s+2*h}], v{va} offset:{(8*s+4*h)*P1}")
        if b == 0: A("s_waitcnt lgkmcnt(0)")
    for s in range(4): A(f"v_mfma_f32_16x16x32_bf16 v[40:43], v[{48+4*s}:{51+4*s}], v[{8+4*s}:{11+4*s}], {'0' if s == 0 else 'v[40:43]'}")
    A("s_waitcnt lgkmcnt(0)")
    for s in range(4): A(f"v_mfma_f32_16x16x32_bf16 v[80:83], v[{64+4*s}:{67+4*s}], v[{8+4*s}:{11+4*s}], {'0' if s == 0 else 'v[80:83]'}")
    A("v_cmp_eq_u32 vcc, 1, v7\ns_nop 7")
    for r in range(4): A(f"v_cndmask_b32 v{40+r}, v{40+r}, v{80+r}, vcc")
    pack(44, 40)
    A("s_mov_b32 s44, 0x00030003\ns_mov_b32 s45, 0x00030003\ns_mov_b64 exec, s[44:45]")
    A("buffer_store_dwordx4 v[44:47], v114, s[36:39], s42 offen sc1\ns_mov_b64 exec, -1")
    A("L_gq:")
    stamp(5)
    A(f"v_lshlrev_b32 v113, 4, v0\ns_lshl_b32 s42, s7, 3\ns_add_u32 s42, s42, s5\ns_lshl_b32 s42, s42, 12\ns_add_u32 s42, s42, {W_QP}")
    A(f"v_and_b32 v48, 31, v0\nv_lshlrev_b32 v48, 3, v48\nv_lshrrev_b32 v49, 5, v0\nv_lshl_add_u32 v48, v49, 2, v48\ns_mul_i32 s43, s5, {QPITCH}\ns_add_u32 s43, s43, {QB}\nv_add_u32 v48, s43, v48")
    gather([f"buffer_load_dwordx4 v[{24+4*t}:{27+4*t}], v113, s[36:39], s42 offen offset:{1024*t} sc1" for t in range(4)], [27, 31, 35, 39], sleep1)
    stamp(6)
    for t in range(4): unpack4(24 + 4 * t)
    A("v_pk_add_f32 v[24:25], v[24:25], v[28:29]\nv_pk_add_f32 v[26:27], v[26:27], v[30:31]\nv_pk_add_f32 v[32:33], v[32:33], v[36:37]\nv_pk_add_f32 v[34:35], v[34:35], v[38:39]")
    A("v_pk_add_f32 v[24:25], v[24:25], v[32:33]\nv_pk_add_f32 v[26:27], v[26:27], v[34:35]\ns_nop 1")
    A("v_permlane32_swap_b32 v24, v26\nv_permlane32_swap_b32 v25, v27\ns_nop 1\nv_pk_add_f32 v[24:25], v[24:25], v[26:27]")
    A("v_cvt_pk_bf16_f32 v24, v24, v25\nds_write_b32 v48, v24")
    lds_inc(F_Q)
    A("s_cmp_ge_u32 s5, 4\ns_cbranch_scc1 L_fh")
    A(f"v_mul_u32_u24 v50, {P1}, v5\nv_mul_u32_u24 v51, 320, v6\nv_lshl_add_u32 v51, v4, 4, v51")
    for s in range(4): A(f"v_xor_b32 v{52+s}, {64*s}, v51\nv_add3_u32 v{52+s}, v{52+s}, v50, v126")
    A(f"v_and_b32 v50, 7, v0\nv_mul_u32_u24 v50, {QPITCH}, v50\nv_lshl_add_u32 v50, v4, 4, v50\nv_add_u32 v50, {QB}, v50")
    for s in range(4): A(f"v_subrev_u32 v{52+s}, {FL-RK}, v{52+s}")
    A(f"s_lshl_b32 s15, s5, 6\nv_xor_b32 v116, s15, v120\nv_xor_b32 v115, 32, v116\nv_add_u32 v116, v116, v121\nv_add_u32 v116, {RV}, v116\nv_add_u32 v115, v115, v121\nv_add_u32 v115, {RV}, v115")
    lds_wait(F_PROG, 80)
    for kb in range(4):
        for s in range(4):
            r = 56 + 16 * kb + 4 * s if kb < 3 else 8 + 4 * s
            A(f"ds_read_b128 v[{r}:{r+3}], v{52+s} offset:{4*kb*P1}")
        if kb == 2: A("s_waitcnt lgkmcnt(4)")
    lds_wait(F_Q, 8)
    stamp(7)
    for s in range(4): A(f"ds_read_b128 v[{24+4*s}:{27+4*s}], v50 offset:{64*s}")
    acc = [40, 44, 104, 108]
    for s in range(4):
        A(f"s_waitcnt lgkmcnt({3-s})" if not stamps else "s_waitcnt lgkmcnt(0)")
        for kb in range(4):
            r = 56 + 16 * kb + 4 * s if kb < 3 else 8 + 4 * s
            A(f"v_mfma_f32_16x16x32_bf16 v[{acc[kb]}:{acc[kb]+3}], v[{r}:{r+3}], v[{24+4*s}:{27+4*s}], {'0' if s == 0 else f'v[{acc[kb]}:{acc[kb]+3}]'}")
    lds_wait(F_PROG, 96)
    for b, va in ((0, 116), (1, 115)):
        for s in range(2):
            for h in range(2): A(f"ds_read_b64_tr_b16 v[{56+8*b+4*s+2*h}:{57+8*b+4*s+2*h}], v{va} offset:{(8*s+4*h)*P1}")
    for r in range(8): A(f"v_mov_b32_dpp v{40+r}, v{104+r} quad_perm:[0,1,2,3] row_mask:0xf bank_mask:0xc")
    A("s_mov_b32 s44, 0x3db504f3\ns_mov_b32 s45, 0x3fb8aa3b")
    for r in range(4): A(f"v_cvt_pk_bf16_f32 v{24+r}, v{40+2*r}, v{41+2*r}")
    for r in range(4): A(f"v_lshlrev_b32 v{40+2*r}, 16, v{24+r}\nv_and_b32 v{41+2*r}, s52, v{24+r}")
    for r in range(8): A(f"v_mul_f32 v{40+r}, s44, v{40+r}")
    for r in range(4): A(f"v_cvt_pk_bf16_f32 v{24+r}, v{40+2*r}, v{41+2*r}")
    for r in range(4): A(f"v_lshlrev_b32 v{40+2*r}, 16, v{24+r}\nv_and_b32 v{41+2*r}, s52, v{24+r}")
    A("v_max3_f32 v28, v40, v41, v42\nv_max3_f32 v29, v43, v44, v45\nv_max3_f32 v28, v28, v46, v47\nv_max_f32 v28, v28, v29\ns_nop 1")
    A("v_max_f32_dpp v28, v28, v28 row_ror:8 row_mask:0xf bank_mask:0xf")
    xrow(28, 29, "v_max_f32")
    A("v_mul_f32 v28, s45, v28")
    for r in range(8): A(f"v_fma_f32 v{40+r}, v{40+r}, s45, -v28")
    for r in range(8): A(f"v_exp_f32 v{40+r}, v{40+r}")
    A("s_nop 0")
    for r in range(4): A(f"v_cvt_pk_bf16_f32 v{24+r}, v{40+2*r}, v{41+2*r}")
    A("s_waitcnt lgkmcnt(0)\ns_nop 0")
    for b in range(2):
        for s in range(2):
            d = 72 + 8 * b + 4 * s
            A(f"v_mfma_f32_16x16x32_bf16 v[{d}:{d+3}], v[{56+8*b+4*s}:{59+8*b+4*s}], v[24:27], 0")
    A("v_pk_add_f32 v[40:41], v[40:41], v[42:43]\nv_pk_add_f32 v[44:45], v[44:45], v[46:47]\nv_pk_add_f32 v[40:41], v[40:41], v[44:45]\nv_add_f32 v29, v40, v41\ns_nop 1")
    A("v_add_f32_dpp v29, v29, v29 row_ror:8 row_mask:0xf bank_mask:0xf")
    xrow(29, 30)
    A("v_mov_b32 v31, s59")
    A("v_and_b32 v32, 7, v0\nv_lshlrev_b32 v33, 15, v32\nv_and_b32 v34, 8, v0\nv_lshl_add_u32 v33, v34, 3, v33\nv_add_u32 v33, v33, v117\nv_lshlrev_b32 v32, 10, v32")
    A(f"s_lshl_b32 s42, s7, 18\ns_lshl_b32 s43, s5, 13\ns_add_u32 s42, s42, s43\ns_lshl_b32 s43, s9, 7\ns_add_u32 s42, s42, s43\ns_add_u32 s42, s42, {W_OP}")
    A(f"s_lshl_b32 s46, s7, 13\ns_lshl_b32 s43, s9, 4\ns_add_u32 s46, s46, s43\ns_add_u32 s46, s46, {W_ML}")
    for r in range(4):
        A(f"v_add_f32_dpp v{40+r}, v{76+r}, v{72+r} row_ror:8 row_mask:0xf bank_mask:0x3")
        A(f"v_add_f32_dpp v{40+r}, v{80+r}, v{84+r} row_ror:8 row_mask:0xf bank_mask:0xc")
    pack(44, 40)
    A("buffer_store_dwordx4 v[44:47], v33, s[36:39], s42 offen sc1")
    A("s_cmp_lg_u32 s5, 0\ns_cbranch_scc1 L_go\ns_mov_b64 exec, 0xff\nbuffer_store_dwordx4 v[28:31], v32, s[36:39], s46 offen sc1\ns_mov_b64 exec, -1\ns_branch L_go")
    A("L_fh:\ns_cmp_ge_u32 s4, 28\ns_cbranch_scc1 L_go")
    A(f"v_and_b32 v48, 31, v0\nv_lshlrev_b32 v48, 4, v48\ns_and_b32 s43, s10, 4\ns_add_u32 s43, s43, s5\ns_sub_u32 s43, s43, 4\ns_lshl_b32 s43, s43, 9\ns_lshl_b32 s42, s12, 12\ns_add_u32 s42, s42, s43\ns_add_u32 s42, s42, {W_HP}")
    A(f"s_and_b32 s43, s5, 2\ns_lshl_b32 s43, s43, 5\ns_and_b32 s44, s5, 1\ns_lshl_b32 s44, s44, 3\ns_add_u32 s43, s43, s44\ns_add_u32 s43, s43, {HB}\nv_lshl_add_u32 v49, v6, 4, s43")
    gather(["buffer_load_dwordx4 v[24:27], v48, s[36:39], s42 offen sc1"], [27], sleep1)
    unpack4(24)
    for m in ("row_ror:4", "row_ror:8"):
        A("s_nop 1")
        for r in range(4): A(f"v_add_f32_dpp v{24+r}, v{24+r}, v{24+r} {m} row_mask:0xf bank_mask:0xf")
    for r in range(4): A(f"v_mov_b32 v{28+r}, v{24+r}")
    A("s_nop 1")
    for r in range(4): A(f"v_permlane16_swap_b32 v{24+r}, v{28+r}")
    A("s_nop 1\nv_pk_add_f32 v[24:25], v[24:25], v[28:29]\nv_pk_add_f32 v[26:27], v[26:27], v[30:31]")
    A("v_cvt_pk_bf16_f32 v25, v24, v25\nv_cvt_pk_bf16_f32 v27, v26, v27\nv_lshlrev_b32 v24, 16, v25\nv_and_b32 v25, s52, v25\nv_lshlrev_b32 v26, 16, v27\nv_and_b32 v27, s52, v27")
    for r in range(4): A(f"v_mul_f32 v{28+r}, 0xbfb8aa3b, v{24+r}")
    for r in range(4): A(f"v_exp_f32 v{28+r}, v{28+r}")
    for r in range(4): A(f"v_add_f32 v{28+r}, 1.0, v{28+r}")
    for r in range(4): A(f"v_rcp_f32 v{28+r}, v{28+r}")
    for r in range(4): A(f"v_mul_f32 v{24+r}, v{24+r}, v{28+r}")
    A("v_cvt_pk_bf16_f32 v24, v24, v25\nv_cvt_pk_bf16_f32 v25, v26, v27\nds_write_b64 v49, v[24:25]")
    lds_inc(F_H)
    A("L_go:")
    stamp(8)
    A("v_lshrrev_b32 v48, 1, v0\nv_lshlrev_b32 v49, 4, v48\nv_lshlrev_b32 v48, 7, v48\nv_and_b32 v50, 1, v0\nv_lshl_add_u32 v48, v50, 4, v48")
    A(f"s_lshl_b32 s42, s14, 14\ns_lshr_b32 s43, s5, 2\ns_lshl_b32 s43, s43, 13\ns_add_u32 s42, s42, s43\ns_and_b32 s43, s5, 3\ns_lshl_b32 s43, s43, 5\ns_add_u32 s42, s42, s43\ns_add_u32 s42, s42, {W_OP}\ns_add_u32 s47, s42, 4096")
    A(f"s_lshr_b32 s46, s14, 1\ns_lshl_b32 s46, s46, 10\ns_add_u32 s46, s46, {W_ML}")
    A(f"s_and_b32 s43, s5, 4\ns_lshl_b32 s43, s43, 4\ns_and_b32 s44, s5, 2\ns_lshl_b32 s44, s44, 2\ns_add_u32 s43, s43, s44\ns_and_b32 s44, s5, 1\ns_lshl_b32 s44, s44, 5\ns_add_u32 s43, s43, s44\ns_add_u32 s43, s43, {OB}\nv_lshl_add_u32 v50, v50, 4, s43")
    A(f"s_and_b32 s15, s5, 3\ns_lshl_b32 s15, s15, 6\nv_xor_b32 v116, s15, v120\nv_xor_b32 v115, 32, v116\ns_lshr_b32 s15, s5, 2\ns_lshl_b32 s15, s15, 10\nv_add3_u32 v116, v116, v122, s15\nv_add3_u32 v115, v115, v122, s15")
    A(f"v_add_u32 v114, {RO}, v116\nv_add_u32 v112, {RO}, v115")
    gather(["buffer_load_dwordx4 v[24:27], v49, s[36:39], s46 offen sc1", "buffer_load_dwordx4 v[28:31], v49, s[36:39], s46 offen offset:512 sc1",
            "buffer_load_dwordx4 v[32:35], v48, s[36:39], s42 offen sc1", "buffer_load_dwordx4 v[36:39], v48, s[36:39], s47 offen sc1"], [27, 31, 35, 39], sleep1)
    stamp(9)
    A("v_max_f32 v26, v24, v28")
    unpack4(32)
    for m in ("quad_perm:[2,3,0,1]", "row_ror:4", "row_ror:8"): A(f"s_nop 1\nv_max_f32_dpp v26, v26, v26 {m} row_mask:0xf bank_mask:0xf")
    xrow(26, 27, "v_max_f32")
    unpack4(36)
    A("v_sub_f32 v24, v24, v26\nv_sub_f32 v28, v28, v26\nv_exp_f32 v24, v24\nv_exp_f32 v28, v28\ns_nop 0")
    A("v_mul_f32 v40, v24, v25\nv_fma_f32 v40, v28, v29, v40")
    for r in range(4): A(f"v_mul_f32 v{32+r}, v24, v{32+r}")
    for r in range(4): A(f"v_fma_f32 v{36+r}, v28, v{36+r}, v{32+r}")
    for m in ("quad_perm:[2,3,0,1]", "row_ror:4", "row_ror:8"):
        for r in (40, 36, 37, 38, 39): A(f"v_add_f32_dpp v{r}, v{r}, v{r} {m} row_mask:0xf bank_mask:0xf")
    for sw in ("v_permlane16_swap_b32", "v_permlane32_swap_b32"):
        for r in range(5): A(f"v_mov_b32 v{28+r}, v{36+r}")
        A("s_nop 0")
        for r in range(5): A(f"{sw} v{36+r}, v{28+r}")
        A("s_nop 0")
        for r in range(5): A(f"v_add_f32 v{36+r}, v{36+r}, v{28+r}")
    A("v_rcp_f32 v40, v40\ns_nop 0")
    for r in range(4): A(f"v_mul_f32 v{36+r}, v{36+r}, v40")
    A("v_cvt_pk_bf16_f32 v36, v36, v37\nv_cvt_pk_bf16_f32 v37, v38, v39\nds_write_b64 v50, v[36:37]")
    lds_inc(F_O)
    for r in range(8): A(f"v_mov_b32 v{40+r}, 0")
    A(f"v_lshl_add_u32 v51, v7, 6, v117\ns_lshl_b32 s42, s13, 3\ns_add_u32 s42, s42, s5\ns_lshl_b32 s42, s42, 13\ns_lshl_b32 s43, s14, 7\ns_add_u32 s42, s42, s43\ns_add_u32 s42, s42, {W_FP}")
    def fin(va, vb, vecoff, flag, thr, prog):
        lds_wait(flag, thr)
        for s in range(2): A(f"ds_read_b128 v[{8+4*s}:{11+4*s}], v118 offset:{vecoff-XN+64*s}")
        lds_wait(F_PROG, prog)
        for b, v in ((0, va), (1, vb)):
            for s in range(2):
                for h in range(2): A(f"ds_read_b64_tr_b16 v[{56+8*b+4*s+2*h}:{57+8*b+4*s+2*h}], v{v} offset:{(8*s+4*h)*P2}")
        for b in range(2):
            for s in range(2):
                A(f"s_waitcnt lgkmcnt({6-4*b-2*s})" if not stamps else "s_waitcnt lgkmcnt(0)")
                A(f"v_mfma_f32_16x16x32_bf16 v[{40+4*b}:{43+4*b}], v[{56+8*b+4*s}:{59+8*b+4*s}], v[{8+4*s}:{11+4*s}], v[{40+4*b}:{43+4*b}]")
    A("s_cmp_ge_u32 s4, 28\ns_cbranch_scc1 L_wo")
    fin(116, 115, HB, F_H, 4, 128)
    A("L_wo:")
    stamp(10)
    fin(114, 112, OB, F_O, 8, 160)
    A("v_cmp_eq_u32 vcc, 1, v7\ns_nop 7")
    for r in range(4): A(f"v_cndmask_b32 v{40+r}, v{40+r}, v{44+r}, vcc")
    pack(44, 40)
    A("s_mov_b32 s44, 0x00030003\ns_mov_b32 s45, 0x00030003\ns_mov_b64 exec, s[44:45]")
    A("buffer_store_dwordx4 v[44:47], v51, s[36:39], s42 offen sc1\ns_mov_b64 exec, -1")
    stamp(11)
    A("s_cmp_lt_u32 s4, 28\ns_cbranch_scc1 L_fin")
    A(f"s_lshl_b32 s42, s3, 2\ns_add_u32 s42, s42, s4\ns_sub_u32 s42, s42, 28\ns_lshl_b32 s43, s42, 6\ns_lshl_b32 s44, s5, 3\ns_add_u32 s43, s43, s44")
    A(f"s_lshl_b32 s46, s42, 13\ns_lshl_b32 s44, s5, 4\ns_add_u32 s46, s46, s44\ns_add_u32 s46, s46, {W_FP}\nv_lshlrev_b32 v48, 7, v0")
    A("v_lshl_add_u32 v49, v4, 1, s43\nglobal_load_ushort v52, v49, s[16:17]")
    gather(["buffer_load_dwordx4 v[24:27], v48, s[36:39], s46 offen sc1"], [27], 0)
    stamp(12)
    unpack4(24)
    A("s_nop 1\nv_permlane32_swap_b32 v24, v26\nv_permlane32_swap_b32 v25, v27\ns_nop 1\nv_pk_add_f32 v[24:25], v[24:25], v[26:27]\ns_nop 1")
    A("v_permlane16_swap_b32 v24, v25\ns_nop 1\nv_add_f32 v24, v24, v25")
    rowsum(24)
    A("v_lshlrev_b32 v52, 16, v52\nv_add_f32 v24, v24, v52\nv_cvt_pk_bf16_f32 v24, v24, v24")
    A("s_mov_b32 s44, 0x00010001\ns_mov_b32 s45, 0x00010001\ns_mov_b64 exec, s[44:45]")
    A("global_store_short v49, v24, s[40:41]\ns_mov_b64 exec, -1")
    A("s_or_b32 s44, s42, s5\ns_cmp_lg_u32 s44, 0\ns_cbranch_scc1 L_fin")
    A("s_add_u32 s51, s51, 1\nv_mov_b32 v24, s51\nv_mov_b32 v25, 0\ns_mov_b64 exec, 1\nbuffer_store_dword v24, v25, s[36:39], 0 offen sc1\ns_mov_b64 exec, -1")
    A("s_branch L_fin")

    A("L_loader:")
    A("v_lshrrev_b32 v4, 4, v0\nv_and_b32 v5, 15, v0\nv_lshlrev_b32 v6, 2, v4\nv_xor_b32 v5, v5, v6\nv_lshlrev_b32 v5, 4, v5")
    A("v_lshl_add_u32 v8, v4, 13, v5\nv_mul_u32_u24 v9, 7168, v4\nv_add_u32 v9, v9, v5\nv_lshl_add_u32 v10, v4, 8, v5\nv_lshl_add_u32 v11, v4, 11, v5")
    A(f"v_mov_b32 v12, {32-D}")
    A("s_lshl_b32 s42, s8, 20\ns_lshl_b32 s43, s11, 8\ns_add_u32 s42, s42, s43\ns_mov_b32 s34, 0x800000")
    A(f"s_mov_b32 m0, {R0}\ns_mov_b32 s44, 8\ns_waitcnt lgkmcnt(0)\ns_mov_b32 s32, s22\ns_mov_b32 s33, s23")
    stamp(1)
    A("LL0:")
    for i in range(4): A(f"buffer_load_dwordx4 v8, s[32:35], s42 offen {nt} lds\ns_add_u32 m0, m0, {P1}\ns_add_u32 s42, s42, 0x8000")
    A("s_sub_u32 s44, s44, 1\ns_cmp_lg_u32 s44, 0\ns_cbranch_scc1 LL0")
    A("s_barrier")
    stamp(2)
    def region(name, ptr, size, voff, ldsb, n, step, pair):
        l = L("LL")
        A(f"s_mov_b32 s32, s{ptr}\ns_mov_b32 s33, s{ptr+1}\ns_mov_b32 s34, {size:#x}\ns_mov_b32 m0, {ldsb}\ns_mov_b32 s44, {n}")
        A(f"{l}:\ns_waitcnt vmcnt({D})\nds_write_b32 v126, v12\nbuffer_load_dwordx4 {voff}, s[32:35], s42 offen {nt} lds")
        if pair:
            A(f"s_add_u32 m0, m0, 768\nv_add_u32 v12, 2, v12\nbuffer_load_dwordx4 {voff}, s[32:35], s42 offen offset:256 {nt} lds\ns_add_u32 m0, m0, {P2-768}")
        else:
            A(f"s_add_u32 m0, m0, {P1}\nv_add_u32 v12, 1, v12")
        A(f"s_add_u32 s42, s42, {step}\ns_sub_u32 s44, s44, 1\ns_cmp_lg_u32 s44, 0\ns_cbranch_scc1 {l}")
    A(f"s_mul_i32 s42, s8, {128*7168}\ns_lshl_b32 s43, s12, 8\ns_add_u32 s42, s42, s43\ns_cmp_ge_u32 s4, 28\ns_cselect_b32 s42, 0x7000000, s42")
    region("w1", 28, 0x700000, "v9", R1, 32, 4 * 7168, False)
    stamp(3)
    A(f"s_lshl_b32 s45, s7, 24\ns_lshl_b32 s43, s9, 14\ns_add_u32 s45, s45, s43\ns_add_u32 s45, s45, {61440*256}\ns_mov_b32 s42, s45")
    region("K", 18, 0x4000000, "v10", RK, 16, 1024, False)
    A("s_mov_b32 s42, s45")
    region("V", 20, 0x4000000, "v10", RV, 16, 1024, False)
    stamp(4)
    lds_wait(F_CQ, 8)
    A("s_mul_i32 s42, s7, 14\ns_lshr_b32 s43, s10, 2\ns_add_u32 s42, s42, s43\ns_lshl_b32 s42, s42, 17\ns_lshl_b32 s43, s13, 9\ns_add_u32 s42, s42, s43\ns_cmp_ge_u32 s4, 28\ns_cselect_b32 s42, 0x7000000, s42")
    region("w2", 30, 0x700000, "v11", R0, 16, 8192, True)
    stamp(5)
    A("s_lshl_b32 s42, s14, 17\ns_add_u32 s42, s42, s43")
    region("wo", 24, 0x800000, "v11", RO, 16, 8192, True)
    stamp(6)
    A("v_mov_b32 v12, 128\ns_waitcnt vmcnt(32)\nds_write_b32 v126, v12" if D > 32 else "")
    A("v_mov_b32 v12, 160\ns_waitcnt vmcnt(0)\nds_write_b32 v126, v12")
    stamp(7)
    A("L_fin:")
    if stamps:
        stamp(15)
        A("s_waitcnt lgkmcnt(0)\nv_mov_b32 v8, 0")
        for i in range(16): A(f"v_writelane_b32 v8, s{64+2*i}, {i}")
        A("s_lshl_b32 s6, s2, 4\ns_add_u32 s6, s6, s5\ns_lshl_b32 s6, s6, 6\ns_add_u32 s6, s6, 0x8000000")
        A("v_lshlrev_b32 v9, 2, v0\ns_mov_b64 exec, 0xffff\nbuffer_store_dword v8, v9, s[36:39], s6 offen")
    A("L_end:\ns_endpgm")
    return wrap(A.text(), 256, 576, LDS_SIZE, 128)

if __name__ == "__main__":
    open("k1.s", "w").write(gen())
    open("k1_st.s", "w").write(gen(stamps=True))
```
